```python
import torch

def _softmax(x, axis=-1):
    return torch.softmax(x, dim=axis)

def _gelu(x):
    return torch.nn.functional.gelu(x, approximate='tanh')

def _silu(x):
    return torch.nn.functional.silu(x)

def _sigmoid(x):
    return torch.sigmoid(x)

def _layernorm(x, axis=-1, eps=1e-05):
    m = x.mean(dim=axis, keepdim=True)
    v = x.var(dim=axis, keepdim=True, unbiased=False)
    return (x - m) / torch.sqrt(v + eps)

def _scatter_add(tgt, idx, src, axis=0):
    return tgt.clone().index_add_(axis, idx, src)

def _segment_sum(src, seg, n):
    out = torch.zeros((n,) + src.shape[1:], dtype=src.dtype)
    return out.index_add_(0, seg, src)

def _pad(x, pw):
    flat = tuple((v for pair in reversed(pw) for v in pair))
    return torch.nn.functional.pad(x, flat)
kernel_name = 'standalone__ragged_sequences_varlen_flash_attn__ragged'

def setup_inputs():

    _w = lambda a: (lambda t: t.to(torch.bfloat16) if t.is_floating_point() else t)(torch.as_tensor(a))
    cu = torch.tensor([0, 1918, 2650, 4254, 4580, 5262, 6323, 6815, 7972], dtype=torch.int64)
    T = int(cu[-1])
    Hq, Hkv, D = (16, 8, 128)
    assert Hq % Hkv == 0
    return {'q': _w((lambda *s: torch.randn(*s, dtype=torch.bfloat16) * 0.8)(T, Hq, D)), 'k': _w((lambda *s: torch.randn(*s, dtype=torch.bfloat16) * 0.8)(T, Hkv, D)), 'v': _w((lambda *s: torch.randn(*s, dtype=torch.bfloat16) * 0.05)(T, Hkv, D)), 'cu': _w(cu)}

def reference(q, k, v, cu):
    T, Hq, D = q.shape
    Hkv = k.shape[1]
    rep = Hq // Hkv
    scale = D ** (-0.5)
    outs = []
    for i in range(len(cu) - 1):
        s, e = (int(cu[i]), int(cu[i + 1]))
        L = e - s
        qi = q[s:e].clone()
        ki = (lambda x, n, axis: torch.repeat_interleave(x, n, dim=axis))(k[s:e], rep, axis=1)
        vi = (lambda x, n, axis: torch.repeat_interleave(x, n, dim=axis))(v[s:e], rep, axis=1)
        logits = torch.einsum('qhd,khd->hqk', qi, ki) * scale
        ar = torch.arange(L)
        neg = (lambda x, dt: x.to(dt))(ar[None, :] > ar[:, None], logits.dtype) * -1000000000.0
        p = _softmax(logits + neg[None, :, :], axis=-1)
        outs.append(torch.einsum('hqk,khd->qhd', p, vi))
    return torch.concatenate(outs, axis=0)
```

```python
import re, sys

REG = re.compile(r'\b([vas])\[(\d+):(\d+)\]|\b([vas])(\d+)\b|\b(vcc|exec|m0)\b')

def regs(tok):
    out = set()
    for m in REG.finditer(tok):
        if m.group(1):
            out |= {(m.group(1), i) for i in range(int(m.group(2)), int(m.group(3)) + 1)}
        elif m.group(4):
            out.add((m.group(4), int(m.group(5))))
        else:
            out.add(('s', m.group(6)))
    return out

TRANS = ('v_exp_f32', 'v_rcp_f32', 'v_log_f32', 'v_rsq_f32', 'v_sqrt_f32')

class I:
    def __init__(s, text, line):
        s.text = text; s.line = line
        p = text.split(None, 1)
        s.op = p[0]
        ops = [x.strip() for x in p[1].split(',')] if len(p) > 1 else []
        s.ops = ops
        s.mfma = s.op.startswith('v_mfma')
        s.valu = s.op.startswith('v_') and not s.mfma
        s.ds = s.op.startswith('ds_')
        s.vmem = s.op.startswith(('buffer_', 'global_'))
        s.salu = s.op.startswith('s_')
        s.trans = s.op.startswith(TRANS)
        s.w = set(); s.r = set(); s.srcc = set(); s.ab = set(); s.sdata = set()
        s.passes = 0
        if s.mfma:
            s.w = regs(ops[0]); s.ab = regs(ops[1]) | regs(ops[2]); s.srcc = regs(ops[3]); s.r = s.ab | s.srcc
            s.passes = 8 if '32x32' in s.op else 4
        elif s.valu:
            s.w = regs(ops[0])
            for o in ops[1:]: s.r |= regs(o)
            if 'swap' in s.op: s.w |= regs(ops[1]); s.r |= regs(ops[0])
            if s.op.startswith(('v_fmac', 'v_writelane')): s.r |= regs(ops[0])
            if s.op.startswith('v_cndmask') and len(ops) == 3: s.r.add(('s', 'vcc'))
        elif s.ds:
            if 'read' in s.op:
                s.w = regs(ops[0]); s.r = regs(ops[1])
            else:
                for o in ops: s.r |= regs(o)
        elif s.vmem:
            lds = text.rstrip().endswith(' lds') or ' lds ' in text
            s.ldsdma = lds
            if 'load' in s.op and not lds:
                s.w = regs(ops[0])
                for o in ops[1:]: s.r |= regs(o)
            else:
                for o in ops: s.r |= regs(o)
                if 'store' in s.op and ('x4' in s.op or 'x3' in s.op):
                    s.sdata = regs(ops[0]) if s.op.startswith('buffer') else regs(ops[1])
            if lds: s.r.add(('s', 'm0'))
        elif s.salu:
            if s.op.startswith(('s_cmp', 's_bitcmp', 's_cbranch', 's_branch', 's_waitcnt', 's_barrier', 's_nop', 's_endpgm', 's_setprio', 's_sleep')):
                for o in ops: s.r |= regs(o)
            elif ops:
                s.w = regs(ops[0])
                for o in ops[1:]: s.r |= regs(o)
        s.states = 1
        if s.op == 's_nop': s.states = int(ops[0], 0) + 1

def need(p, c):
    n = 0; why = ''
    def up(k, w):
        nonlocal n, why
        if k > n: n, why = k, w
    pw_v = {x for x in p.w if x[0] in 'va'}
    pw_s = {x for x in p.w if x[0] == 's'}
    if p.valu:
        if c.mfma and pw_v & c.r: up(2, 'valu->mfma')
        if p.trans and c.valu and not c.trans and pw_v & c.r: up(1, 'trans->valu')
        if p.trans and (c.ds or c.vmem) and pw_v & c.r: up(1, 'trans->mem')
        if c.op.startswith('v_permlane') and pw_v & c.r: up(2, 'valu->permlane')
        if c.op.startswith(('v_readlane', 'v_readfirstlane')) and pw_v & c.r: up(1, 'valu->readlane')
        if pw_s:
            if c.vmem and pw_s & c.r: up(5, 'valu sgpr->vmem')
            if c.op.startswith(('v_readlane', 'v_writelane')) and pw_s & regs(c.ops[2]): up(4, 'valu sgpr->lanesel')
            if c.valu and pw_s & c.r: up(2, 'valu sgpr->valu')
            if c.salu and pw_s & c.r: up(1, 'valu sgpr->salu (pad)')
    if p.mfma:
        t = {4: (0, 6, 8, 3), 8: (0, 10, 12, 7)}[p.passes]
        if c.mfma:
            if p.w & c.srcc:
                if p.w == c.srcc and p.passes == c.passes: pass
                else: up(t[1], 'mfma->mfma C overlap')
            if p.w & c.ab: up(t[2], 'mfma->mfma AB')
            if p.w & c.w and not (p.w & c.srcc): up(t[1], 'mfma->mfma WAW (pad)')
        elif c.valu or c.ds or c.vmem:
            if p.w & (c.r | c.w): up(t[2], 'mfma D->valu/mem')
        if c.valu and p.srcc & c.w: up(t[3], 'mfma C WAR')
    if p.sdata and (c.valu or c.mfma or c.ds or c.vmem) and p.sdata & c.w: up(2, 'store data WAR')
    if p.salu and ('s', 'm0') in p.w and c.vmem and getattr(c, 'ldsdma', False): up(1, 'm0->ldsdma')
    if p.salu and ('s', 'exec') in p.w and False: pass
    return n, why

def check(text, verbose=True):
    ins = []; labels = {}
    started = False
    for ln, raw in enumerate(text.split('\n'), 1):
        t = raw.split(';')[0].strip()
        if not t: continue
        if t.endswith(':'):
            labels[t[:-1]] = len(ins); started = True; continue
        if t.startswith('.'): continue
        if not started: continue
        ins.append(I(t, ln))
    def succ(i):
        x = ins[i]
        if x.op == 's_endpgm': return []
        if x.op == 's_branch': return [labels[x.ops[0]]]
        if x.op.startswith('s_cbranch'): return [i + 1, labels[x.ops[0]]]
        return [i + 1] if i + 1 < len(ins) else []
    bad = []
    for i, p in enumerate(ins):
        if not (p.valu or p.mfma or p.sdata or (p.salu and ('s', 'm0') in p.w)): continue
        lim = 12 if p.mfma else 5
        seen = {}
        stack = [(j, 0) for j in succ(i)]
        while stack:
            j, d = stack.pop()
            if j >= len(ins) or d >= lim or seen.get(j, 99) <= d: continue
            seen[j] = d
            c = ins[j]
            n, why = need(p, c)
            if n > d: bad.append((p.line, c.line, why, n, d, p.text, c.text))
            for k in succ(j): stack.append((k, d + c.states))
    if verbose:
        for b in bad[:40]:
            print(f"HAZARD {b[2]}: need {b[3]} have {b[4]}\n   L{b[0]}: {b[5]}\n   L{b[1]}: {b[6]}")
        print(f"hazcheck: {len(ins)} instrs, {len(bad)} violations")
    return bad

if __name__ == '__main__':
    check(open(sys.argv[1]).read())

def check_scc(text):
    lines = [l.split(';')[0].strip() for l in text.split('\n')]
    nowrite = ('s_mov', 's_waitcnt', 's_nop', 's_barrier', 's_cbranch', 's_branch', 's_load', 's_getpc', 's_mul_i32', 's_cselect', 's_setprio', 's_memtime', 's_memrealtime', 's_sleep')
    bad = 0
    for i, l in enumerate(lines):
        if l.startswith(('s_cbranch_scc', 's_cselect')):
            j = i - 1
            while True:
                x = lines[j]
                if x.endswith(':'):
                    print("SCC: label between", i + 1, l, "|", x); bad += 1; break
                if x.startswith('s_') and not x.startswith(nowrite):
                    if not x.startswith(('s_cmp', 's_bitcmp')):
                        print("SCC: clobbered", i + 1, l, "by", x); bad += 1
                    break
                j -= 1
    print("scc check:", bad, "problems")
```

```python
import json, sys, os, struct, math
sys.path.insert(0, os.path.dirname(os.path.abspath(__file__)))
import hazcheck

NAME = "standalone__ragged_sequences_varlen_flash_attn__ragged"
CU = [0, 1918, 2650, 4254, 4580, 5262, 6323, 6815, 7972]
TILE = 16640
VBASE = 3 * TILE
STG = 6 * TILE
STGW = 8704
FLAG = STG + 4 * STGW
LDS_BYTES = FLAG + 64
FMAP = [0, 4, 2, 6, 1, 3, 5, 7, 9, 11, 13, 15, 8, 10, 12, 14]
FINV = [FMAP.index(p) for p in range(16)]

OPT = dict(sumA="add", stamp=0, thr=2.0 ** 32)

sK, sV, sQ, sO, sKS = 4, 8, 12, 16, 20
sKoff, sVoff = 24, 25
sRa, sRb, sRc, sRt = 26, 27, 28, 29
sWK, sWV = 30, 31
sIdx, sRemF, sRemH, sIdle = 32, 33, 34, 35
sOA, sOB, sNA, sNB = 36, 37, 38, 39
sFlg, sCold = 40, 41
sM = 42
sC = 50
sBad = 52
sItem, sWave, sSafe, sKVb = 54, 55, 56, 57
sThr = 58
sT = 60
vK, vV, vKb, vVb = 1, 2, 3, 4
vD = 5
vQO, vSl, vSo, vSq = 9, 10, 11, 12
vKs, vOnes = 13, 14
vStr, vItem = 15, 16
vNinf = 17
vL = 18
vT = 20
def NM(b): return 48 + 4 * b
def S(par, b, kvb=0): return 64 + 32 * (b >> 1) + 16 * par + 8 * (b & 1) + 4 * kvb
def O(b, db): return 128 + 32 * b + 4 * db
def Q(b, s): return 16 * b + 4 * s
def KF(kvb, s): return 64 + 16 * kvb + 4 * s
def VF(db): return 96 + 4 * db
def LA(b): return 128 + 4 * b
aOnes, aZero = 144, 148
def v4(r): return f"v[{r}:{r+3}]"
def a4(r): return f"a[{r}:{r+3}]"
def v2(r): return f"v[{r}:{r+1}]"
def s4(r): return f"s[{r}:{r+3}]"
def s2(r): return f"s[{r}:{r+1}]"
MF = "v_mfma_f32_16x16x32_bf16"

def qk(par, b, kvb, s, c0=False, kf=KF):
    d = S(par, b, kvb)
    c = v4(d) if s else ("0" if c0 else v4(NM(b)))
    return f"{MF} {v4(d)}, {a4(kf(kvb, s))}, {a4(Q(b, s))}, {c}"
def qk_group(par, bs, c0=False, bmajor=False, kf=KF):
    order = [(b, kvb) for b in bs for kvb in (0, 1)] if bmajor else [(b, kvb) for kvb in (0, 1) for b in bs]
    return [qk(par, b, kvb, s, c0, kf) for b, kvb in order for s in range(4)]
def pv(par, b, db): return f"{MF} {v4(O(b, db))}, {a4(VF(db))}, {v4(S(par, b))}, {v4(O(b, db))}"
def rs(par, b): return f"{MF} {a4(LA(b))}, {a4(aOnes)}, {v4(S(par, b))}, {a4(LA(b))}"
def msum(b): return b >= 2 or OPT["sumA"] == "mfma"
def pv_group(par, bs):
    out = [pv(par, b, db) for db in range(8) for b in bs]
    out += [rs(par, b) for b in bs if msum(b)]
    return out
def kread(uu, kvb, s): return f"ds_read_b128 {a4(KF(kvb, s))}, v{vK} offset:{(2*uu+kvb)*256 + 64*s}"
def kreads(uu): return [kread(uu, kvb, s) for kvb in (0, 1) for s in range(4)]
def vreads(uu):
    return [f"ds_read_b64_tr_b16 a[{VF(db)+2*j}:{VF(db)+2*j+1}], v{vV} offset:{(2*uu+j)*256 + 16*db}" for db in range(8) for j in (0, 1)]
def dmas(par):
    srd, off = (sK, sKoff) if par == 0 else (sV, sVoff)
    return [f"buffer_load_dwordx4 v{vD+i}, {s4(srd)}, s{off} offen offset:{1040*i} lds" for i in range(4)]
def m0set(par):
    return f"s_add_u32 m0, s{sRa}, s{sWK}" if par == 0 else f"s_add_u32 m0, s{sRc}, s{sWV}"
RDL = f"v_readlane_b32 s{sT}, v{vStr}, s{sIdx}"
ROT = [f"s_mov_b32 s{sRt}, s{sRa}", f"s_mov_b32 s{sRa}, s{sRb}", f"s_mov_b32 s{sRb}, s{sRc}", f"s_mov_b32 s{sRc}, s{sRt}",
       f"s_mov_b32 s{sVoff}, s{sKoff}", f"s_mov_b32 s{sV+2}, s{sK+2}"]
DEC = [f"s_and_b32 s{sT+1}, s{sT}, 0xffff", f"s_lshl_b32 s{sKoff}, s{sT+1}, 11",
       f"s_lshr_b32 s{sT+1}, s{sT}, 16", f"s_lshl_b32 s{sK+2}, s{sT+1}, 11", f"s_add_u32 s{sIdx}, s{sIdx}, 1"]
UPK = f"v_add_u32 v{vK}, s{sRb}, v{vKb}"
UPV = f"v_add_u32 v{vV}, s{sRa}, v{vVb}"

class Blk:
    def __init__(s, mf):
        s.mf = mf
        s.g = [dict(S=[], M=[], V=[], Z=[], cost=0) for _ in mf]
        s.n = len(mf)
    def put(s, g, kind, text):
        G = s.g[g]
        if kind == 'E': G['V'].append(text); G['cost'] += 2; G['E'] = True
        elif kind == 'V': G['V'].append(text); G['cost'] += 1
        elif kind == 'L': G['M'].append(text); G['cost'] += 1
        elif kind == 'D': G['M'].append(text); G['cost'] += 2
        elif kind == 'S': G['S'].append(text)
        elif kind == 'Z': G['Z'].append(text)
    def softmax(s, par, bs, egaps, hi):
        ops = []
        i = 0
        for b in bs:
            x = S(par, b)
            for j in range(4):
                for e in (2*j, 2*j+1):
                    s.put(egaps[i], 'E', f"v_exp_f32 v{x+e}, v{x+e}")
                    if not msum(b): ops.append([egaps[i]+1, hi, 'V', f"v_add_f32 v{vL+b}, v{vL+b}, v{x+e}"])
                    i += 1
                ops.append([egaps[i-1]+1, hi, 'V', f"v_cvt_pk_bf16_f32 v{x+j}, v{x+2*j}, v{x+2*j+1}"])
        return ops
    def fill(s, streams):
        pos = [0] * len(streams)
        for g in range(s.n):
            while True:
                best = None
                for k, st in enumerate(streams):
                    if pos[k] >= len(st): continue
                    lo, hi, kind, text = st[pos[k]]
                    if lo > g: continue
                    eff = min(o[1] - (j - pos[k]) for j, o in enumerate(st) if j >= pos[k])
                    forced = min(o[1] for o in st[pos[k]:]) <= g
                    if not forced and s.g[g]['cost'] >= 2: continue
                    key = (0 if forced else 1, eff)
                    if best is None or key < best[0]: best = (key, k)
                if best is None: break
                k = best[1]
                lo, hi, kind, text = streams[k][pos[k]]
                s.put(g, kind, text); pos[k] += 1
        for k, st in enumerate(streams):
            assert pos[k] == len(st), ("unplaced", st[pos[k]:])
    def salu(s, ops, lo, hi=None):
        g = lo; last = lo; z = False
        for t in ops:
            while True:
                assert g < s.n, ("no scalar slot", t)
                G = s.g[g]
                if not z and not G['S']:
                    G['S'].append(t); last = g; z = True; break
                if G.get('E') and G['cost'] == 2 and not G['Z']:
                    G['Z'].append(t); last = g; g += 1; z = False; break
                g += 1; z = False
        if hi is not None: assert last <= hi, ("scalar ops late", last, hi)
        return last
    def emit(s):
        out = []
        for m, G in zip(s.mf, s.g):
            out.append(m); out += G['S'] + G['M'] + G['V'] + G['Z']
        return resolve_waits(out)
    def over(s): return sum(max(0, G['cost'] - 2) for G in s.g)

def resolve_waits(seq):
    out = []; ds = []
    done = 0
    for x in seq:
        if isinstance(x, tuple):
            need = max([i + 1 for i, d in enumerate(ds) if d & x[1]] + [0])
            n = len(ds) - need
            assert n <= 15
            out.append(f"s_waitcnt lgkmcnt({n})"); done = max(done, need); continue
        if x.endswith(':'): out.append(x); continue
        I = hazcheck.I(x, 0)
        if I.ds: ds.append(I.w)
        elif I.op == 's_waitcnt' and 'lgkmcnt(0)' in x: done = len(ds)
        else:
            for i in range(done, len(ds)):
                assert not (ds[i] & (I.r | I.w)), ("uncovered LDS result", x)
        out.append(x)
    return out
def W(*rr):
    st = set()
    for r in rr: st |= {('a', r + i) for i in range(4)}
    return ('wait', st)

outline = []
def mask_code(par, bs, bit, tag):
    L = [f"s_bitcmp1_b32 s{sFlg}, {bit}", f"s_cbranch_scc1 {tag}_odd"]
    for b in bs:
        for r in range(4): L.append(f"v_cndmask_b32 v{S(par,b,0)+r}, v{S(par,b,0)+r}, v{vNinf}, {s2(sM+2*r)}")
        for r in range(4): L.append(f"v_mov_b32 v{S(par,b,1)+r}, v{vNinf}")
    L += [f"s_branch {tag}_back", f"{tag}_odd:"]
    for b in bs:
        for r in range(4): L.append(f"v_cndmask_b32 v{S(par,b,1)+r}, v{S(par,b,1)+r}, v{vNinf}, {s2(sM+2*r)}")
    L.append(f"s_branch {tag}_back")
    return L
def mask_hook(B, g, par, bs, bit, cmp, tag, nops=0):
    B.put(g - 1, 'S', cmp)
    B.put(g, 'S', f"s_cbranch_scc1 {tag}")
    B.put(g, 'S', f"{tag}_back:")
    outline.extend([f"{tag}:"] + ([f"s_nop {nops-1}"] if nops else []) + mask_code(par, bs, bit, tag))

def duties(B, par, dgaps, nqk, rd_lo, endwait=True):
    extra = []
    if par == 0:
        B.put(0, 'S', "s_barrier")
        extra.append([0, nqk - 1, 'V', UPK])
    B.salu([m0set(par)], max(1, dgaps[0] - 2), dgaps[0] - 1)
    for g, t in zip(dgaps, dmas(par)): B.put(g, 'D', t)
    return extra

def finish(B, par, dlast, vlast, ctl, endwait=True):
    n = B.n
    w = "s_waitcnt vmcnt(8) lgkmcnt(0)" if (par == 1 and endwait) else "s_waitcnt lgkmcnt(0)"
    B.put(n - 1, 'S', w)
    for t in ctl: B.put(n - 1, 'Z', t)

def odd_book(B, g0):
    g = g0
    while B.g[g]['cost'] >= 2: g += 1
    B.put(g, 'V', RDL)
    l1 = B.salu(ROT, g0)
    l2 = B.salu(DEC, max(l1, g) + 1, B.n - 2)
    g = l1 + 1
    while B.g[g]['cost'] >= 2: g += 1
    B.put(g, 'V', UPV)

def blockF(par):
    nx = 1 - par
    mf = qk_group(nx, (0, 1)) + qk_group(nx, (2, 3)) + pv_group(par, (0, 1)) + pv_group(par, (2, 3))
    B = Blk(mf); n = B.n
    pvB = 32 + len(pv_group(par, (0, 1)))
    dg = [2, 10, 18, 26]
    ex = duties(B, par, dg, 32, 0)
    mask_hook(B, 32, nx, (0, 1), 0, f"s_cmp_eq_u32 s{sRemF}, 1", f"LmF{par}")
    sB = B.softmax(par, (2, 3), list(range(1, 32, 2)), pvB - 3)
    sA = B.softmax(nx, (0, 1), list(range(33, 65, 2)), n - 1)
    if par == 1: odd_book(B, 34)
    vr = [[0, 31, 'L', t] for t in vreads(par)]
    kr = [[32, n - 10, 'L', t] for t in kreads(par)]
    B.fill([vr, kr, sB, sA, ex])
    B.salu([W(*[VF(d) for d in range(4)])], 29, 31)
    B.put(39, 'Z', W(*[VF(d) for d in range(4, 8)]))
    B.salu([f"s_sub_u32 s{sRemF}, s{sRemF}, 1", f"s_cmp_eq_u32 s{sRemF}, 0"], n - 4, n - 2)
    ctl = [f"s_cbranch_scc1 LT{nx}"] + ([f"s_branch LF0"] if par == 1 else [])
    if par == 1: ctl = [f"s_cbranch_scc0 LF0", f"s_branch LT0"]
    finish(B, par, dg[-1], 31, ctl)
    return B

def blockT(par):
    nx = 1 - par
    pa = pv_group(par, (0, 1))
    mf = qk_group(nx, (2, 3), bmajor=True) + pa + pv_group(par, (2,)) + pv_group(par, (3,))
    B = Blk(mf); n = B.n
    p2 = 16 + len(pa); p3 = p2 + 9
    dg = [18, 22, 26, 30]
    ex = duties(B, par, dg, 16, 0)
    mask_hook(B, 24, nx, (2, 3), 1, f"s_cmp_eq_u32 s{sRemH}, 0", f"LmT{par}")
    s2_ = B.softmax(par, (2,), list(range(1, 17, 2)), p2 - 3)
    s3_ = B.softmax(par, (3,), list(range(17, 33, 2)), p3 - 3)
    sn = B.softmax(nx, (2,), list(range(33, 49, 2)), n - 1)
    if par == 1: odd_book(B, 32)
    vr = [[0, 15, 'L', t] for t in vreads(par)]
    kr = [[16, n - 9, 'L', t] for t in kreads(par)]
    B.fill([vr, kr, s2_ + s3_ + sn, ex])
    B.put(15, 'Z', W(*[VF(d) for d in range(3)]))
    B.put(21, 'Z', W(*[VF(d) for d in range(3, 8)]))
    B.salu([f"s_cmp_eq_u32 s{sRemH}, 0"], n - 3, n - 2)
    finish(B, par, dg[-1], 15, [f"s_cbranch_scc1 LL{nx}", f"s_branch LH{nx}"])
    return B

def blockH(par):
    nx = 1 - par
    mf = qk_group(nx, (2, 3), bmajor=True) + pv_group(par, (2,)) + pv_group(par, (3,))
    B = Blk(mf); n = B.n
    dg = [16, 18, 20, 22] if par == 1 else [26, 28, 30, 32]
    ex = duties(B, par, dg, 16, 0)
    mask_hook(B, 17, nx, (2, 3), 1, f"s_cmp_eq_u32 s{sRemH}, 1", f"LmH{par}", nops=6)
    s3_ = B.softmax(par, (3,), list(range(1, 17, 2)), 22)
    sn = B.softmax(nx, (2,), list(range(17, 33, 2)), n - 1)
    if par == 1: odd_book(B, 23)
    vr = [[0, 15, 'L', t] for t in vreads(par)]
    kr = [[16, n - 6, 'L', t] for t in kreads(par)]
    B.fill([vr, kr, s3_ + sn, ex])
    B.put(15, 'Z', W(*[VF(d) for d in range(4)]))
    B.put(19, 'Z', W(*[VF(d) for d in range(4, 8)]))
    B.put(n - 2, 'Z', f"s_sub_u32 s{sRemH}, s{sRemH}, 1")
    B.put(n - 2, 'Z', f"s_cmp_eq_u32 s{sRemH}, 0")
    ctl = [f"s_cbranch_scc1 LL1"] if par == 0 else [f"s_cbranch_scc0 LH0", f"s_branch LL0"]
    finish(B, par, dg[-1], 15, ctl)
    return B

def even_duty(): return ["s_barrier", m0set(0), UPK] + dmas(0)
def odd_duty(): return [m0set(1), RDL] + dmas(1) + ROT + DEC + [UPV]

def softmax_plain(par, bs):
    L = []
    for b in bs:
        x = S(par, b)
        for e in range(8): L.append(f"v_exp_f32 v{x+e}, v{x+e}")
    for b in bs:
        x = S(par, b)
        if not msum(b):
            for e in range(8): L.append(f"v_add_f32 v{vL+b}, v{vL+b}, v{x+e}")
        for j in range(4): L.append(f"v_cvt_pk_bf16_f32 v{x+j}, v{x+2*j}, v{x+2*j+1}")
    return L

def blockL(par):
    L = []
    if par == 0: L += ["s_barrier"]
    L += vreads(par)
    L += softmax_plain(par, (3,))
    mf = pv_group(par, (2,)) + pv_group(par, (3,))
    B = Blk(mf)
    if par == 0:
        B.put(0, 'S', m0set(0)); B.put(0, 'V', UPK)
        for g, t in zip((1, 2, 3, 4), dmas(0)): B.put(g, 'D', t)
    B.put(5, 'S', m0set(1)); B.put(5, 'V', RDL)
    for g, t in zip((6, 7, 8, 9), dmas(1)): B.put(g, 'D', t)
    k = ROT + DEC
    for i, t in enumerate(k): B.put(10 + i // 2, 'S', t)
    B.put(17, 'V', UPV)
    L += ["s_waitcnt lgkmcnt(0)"]
    for m, G in zip(B.mf, B.g): L.append(m); L += G['S'] + G['M'] + G['V'] + G['Z']
    return resolve_waits(L)

def qloads():
    L = []
    for blk, so in ((0, sNA), (1, sNB)):
        L.append(f"s_mov_b32 s{sT+2}, s{so}")
        for j in range(8):
            L.append(f"buffer_load_dwordx4 {v4(64 + 32*blk + 4*j)}, v{vQO}, {s4(sQ)}, s{sT+2} offen")
            if j < 7: L.append(f"s_add_u32 s{sT+2}, s{sT+2}, 8192")
    return L
def next_fields():
    return [f"v_readlane_b32 s{sNA}, v{vItem}, s{sItem}", f"s_add_u32 s{sT+2}, s{sItem}, 1",
            f"v_readlane_b32 s{sNB}, v{vItem}, s{sT+2}", f"s_add_u32 s{sT+2}, s{sItem}, 2",
            f"v_readlane_b32 s{sQ+2}, v{vItem}, s{sT+2}", "s_nop 4"]

def prescale(blk):
    L = []
    for j in range(8):
        L.append(f"s_waitcnt vmcnt({31 - 8*blk - j})")
        r0 = 64 + 32*blk + 4*j
        for i in range(4):
            t = vT + 2*i
            L += [f"v_lshlrev_b32 v{t}, 16, v{r0+i}", f"v_and_b32 v{t+1}, 0xffff0000, v{r0+i}"]
        for i in range(4): L.append(f"v_pk_mul_f32 {v2(vT+2*i)}, {v2(vT+2*i)}, {s2(sC)}")
        for i in range(4): L.append(f"v_cvt_pk_bf16_f32 v{r0+i}, v{vT+2*i}, v{vT+2*i+1}")
        L.append(f"ds_write_b128 v{vSl}, {v4(r0)} offset:{544*j}")
    for hb in range(2):
        for s in range(4): L.append(f"ds_read_b128 {a4(Q(2*blk+hb, s))}, v{vSq} offset:{4352*hb + 64*s}")
    return L

def xquad(op, t, u):
    L = []
    for sw in ("v_permlane32_swap_b32", "v_permlane16_swap_b32"):
        for a, b in zip(t, u): L.append(f"v_mov_b32 v{b}, v{a}")
        L.append("s_nop 1")
        for a, b in zip(t, u): L.append(f"{sw} v{a}, v{b}")
        for a, b in zip(t, u): L.append(f"{op} v{a}, v{a}, v{b}")
    return L

def max8(par, b, t, first):
    x = S(par, b)
    if first:
        return [f"v_max3_f32 v{t}, v{x}, v{x+1}, v{x+2}", f"v_max3_f32 v{t}, v{t}, v{x+3}, v{x+4}",
                f"v_max3_f32 v{t}, v{t}, v{x+5}, v{x+6}", f"v_max_f32 v{t}, v{t}, v{x+7}"]
    return [f"v_max3_f32 v{t}, v{t}, v{x+2*i}, v{x+2*i+1}" for i in range(4)]

def safe_pass():
    u, off, nS, nL = sT+4, sT+5, sT+6, sT+7
    kf = lambda kvb, s: 96 + 16*kvb + 4*s
    L = ["Lsafe:", f"s_add_u32 s{nS}, s{sRemF}, 1", f"s_add_u32 s{nL}, s{nS}, s{sRemH}", f"s_add_u32 s{nL}, s{nL}, 1",
         f"s_lshr_b32 s{sKS+2}, s{sO+2}, 1", f"s_mov_b32 s{u}, 1", f"s_add_u32 s{off}, s{sKVb}, 65536", "Lsafe_loop:"]
    for kvb in range(2):
        for s in range(4): L.append(f"buffer_load_dwordx4 {a4(kf(kvb, s))}, v{vKs}, {s4(sKS)}, s{off} offen offset:{64*s}")
        L.append(f"s_add_u32 s{off}, s{off}, 32768")
    L += ["s_waitcnt vmcnt(0)"] + qk_group(1, (0, 1, 2, 3), c0=True, kf=kf) + ["s_nop 7", f"s_add_u32 s{u}, s{u}, 1"]
    L += [f"s_cmp_eq_u32 s{u}, s{nS}", "s_cbranch_scc1 LmSA", "LmSA_back:", f"s_cmp_eq_u32 s{u}, s{nL}", "s_cbranch_scc1 LmSB", "LmSB_back:"]
    L += [f"s_cmp_gt_u32 s{u}, s{nS}", "s_cbranch_scc1 Lsafe_noA"] + max8(1, 0, vT, False) + max8(1, 1, vT+1, False) + ["Lsafe_noA:"]
    L += max8(1, 2, vT+2, False) + max8(1, 3, vT+3, False)
    L += [f"s_cmp_lt_u32 s{u}, s{nL}", "s_cbranch_scc1 Lsafe_loop", "s_branch Lsafe_back"]
    L += ["LmSA:"] + mask_code(1, (0, 1), 0, "LmSA") + ["LmSB:"] + mask_code(1, (2, 3), 1, "LmSB")
    return L

def prologue():
    L = ["Litem:"]
    t = sT + 2
    for k, dst in ((3, sRemF), (4, sRemH), (5, sIdle), (6, sFlg), (7, sKVb)):
        L += [f"s_add_u32 s{t}, s{sItem}, {k}", f"v_readlane_b32 s{dst}, v{vItem}, s{t}"]
    L += [f"s_add_u32 s{sItem}, s{sItem}, 8", f"s_mov_b32 s{sO+2}, s{sQ+2}",
          f"s_bitcmp1_b32 s{sFlg}, 2", f"s_cselect_b32 s{sOA}, s{sNA}, s{sQ+2}",
          f"s_bitcmp1_b32 s{sFlg}, 3", f"s_cselect_b32 s{sOB}, s{sNB}, s{sQ+2}"]
    L += prescale(0)
    L += [f"s_cmp_eq_u32 s{sCold}, 0", "s_cbranch_scc1 Lwarm1", "s_barrier", "Lwarm1:"]
    L += kreads(0)
    L += prescale(1)
    for i in range(8): L.append(f"v_mfma_f32_32x32x16_bf16 v[{128+16*i}:{143+16*i}], {a4(aZero)}, {a4(aZero)}, 0")
    L.append(f"v_mfma_f32_32x32x16_bf16 a[128:143], {a4(aZero)}, {a4(aZero)}, 0")
    L += [f"v_mov_b32 v{vL}, 0", f"v_mov_b32 v{vL+1}, 0"]
    L += ["s_waitcnt lgkmcnt(0)"] + qk_group(0, (0, 1), c0=True) + qk_group(0, (2, 3), c0=True)
    L += kreads(1)
    L += [f"s_cmp_eq_u32 s{sRemF}, 0", "s_cbranch_scc1 LmP", "LmP_back:"]
    outline.extend(["LmP:"] + mask_code(0, (0, 1), 0, "LmP"))
    for b in range(4): L += max8(0, b, vT + b, True)
    L += [f"s_cmp_lg_u32 s{sSafe}, 0", "s_cbranch_scc1 Lsafe", "Lsafe_back:"]
    outline.extend(safe_pass())
    L += xquad("v_max_f32", [vT+b for b in range(4)], [vT+4+b for b in range(4)])
    for b in range(4):
        for r in range(4): L.append(f"v_sub_f32 v{NM(b)+r}, 0, v{vT+b}")
    for b in range(4):
        for e in range(0, 8, 2): L.append(f"v_pk_add_f32 {v2(S(0,b)+e)}, {v2(S(0,b)+e)}, {v2(NM(b))}")
    L += softmax_plain(0, (0, 1))
    L += [f"s_cmp_eq_u32 s{sCold}, 0", "s_cbranch_scc1 Lwarm2", "s_waitcnt vmcnt(8)", f"s_mov_b32 s{sCold}, 0", "Lwarm2:"]
    L += ["s_waitcnt lgkmcnt(0)", f"s_cmp_eq_u32 s{sRemF}, 0", "s_cbranch_scc1 LT0"]
    return L

def epi_valu(blk):
    bs = (2*blk, 2*blk+1)
    L = []
    lr = [vT, vT+2]
    if msum(bs[0]):
        for b, r in zip(bs, lr): L.append(f"v_accvgpr_read_b32 v{r}, a{LA(b)}")
    else:
        for b, r in zip(bs, lr): L.append(f"v_mov_b32 v{r}, v{vL+b}")
        L += xquad("v_add_f32", lr, [vT+4, vT+5])
    for r in lr:
        L += [f"v_cmp_ngt_f32 vcc, s{sThr}, v{r}", f"v_rcp_f32 v{r}, v{r}", f"s_or_b64 {s2(sBad)}, {s2(sBad)}, vcc"]
    body = []
    for hb, (b, r) in enumerate(zip(bs, lr)):
        for db in range(8):
            o = O(b, db)
            body.append([f"v_pk_mul_f32 {v2(o)}, {v2(o)}, {v2(r)} op_sel_hi:[1,0]", f"v_pk_mul_f32 {v2(o+2)}, {v2(o+2)}, {v2(r)} op_sel_hi:[1,0]",
                         f"v_cvt_pk_bf16_f32 v{o}, v{o}, v{o+1}", f"v_cvt_pk_bf16_f32 v{o+1}, v{o+2}, v{o+3}",
                         f"ds_write_b64 v{vSo}, {v2(o)} offset:{4352*hb + 16*db}"])
    return L, body
def epi_reads(blk): return [f"ds_read_b128 {v4(O(2*blk, j))}, v{vSl} offset:{544*j}" for j in range(8)]
def epi_stores(blk):
    so = sOA if blk == 0 else sOB
    L = []
    for j in range(8):
        L.append(f"buffer_store_dwordx4 {v4(O(2*blk, j))}, v{vQO}, {s4(sO)}, s{so} offen")
        if j < 7: L.append(f"s_add_u32 s{so}, s{so}, 8192")
    return L
def grouped(body, k=4):
    L = []
    for i in range(0, len(body), k):
        for g in body[i:i+k]: L += g[:2]
        for g in body[i:i+k]: L += g[2:4]
        for g in body[i:i+k]: L.append(g[4])
    return L

def tail():
    L = ["Ltail:", f"s_cmp_eq_u32 s{sIdle}, 0", "s_cbranch_scc1 Lnoidle", "Lidle:", "s_waitcnt vmcnt(8)"]
    L += even_duty() + odd_duty() + [f"s_sub_u32 s{sIdle}, s{sIdle}, 1", f"s_cmp_lg_u32 s{sIdle}, 0", "s_cbranch_scc1 Lidle", "Lnoidle:"]
    L += [f"s_bitcmp1_b32 s{sFlg}, 4", "s_cbranch_scc1 Lnoq"] + next_fields() + qloads() + ["Lnoq:"]
    ha, ba = epi_valu(0); hb_, bb = epi_valu(1)
    L += ha + grouped(ba) + epi_reads(0) + hb_
    gb = grouped(bb)
    L += gb[:16] + ["s_waitcnt lgkmcnt(0)"] + epi_stores(0) + gb[16:] + epi_reads(1) + ["s_waitcnt lgkmcnt(0)"] + epi_stores(1)
    L += [f"s_bitcmp1_b32 s{sFlg}, 4", "s_cbranch_scc0 Litem"]
    L += [f"s_cmp_lg_u32 s{sSafe}, 0", "s_cbranch_scc1 Lend",
          f"s_or_b32 s{sBad}, s{sBad}, s{sBad+1}", f"v_mov_b32 v{vT}, s{sBad}", f"s_lshl_b32 s{sT}, s{sWave}, 2",
          f"s_add_u32 s{sT}, s{sT}, {FLAG}", f"v_mov_b32 v{vT+1}, s{sT}", f"v_mov_b32 v{vT+2}, {FLAG}",
          f"ds_write_b32 v{vT+1}, v{vT}", "s_waitcnt lgkmcnt(0)", "s_barrier",
          f"ds_read_b128 {v4(vT+4)}, v{vT+2}", "s_waitcnt lgkmcnt(0)",
          f"v_or_b32 v{vT+4}, v{vT+4}, v{vT+5}", f"v_or3_b32 v{vT+4}, v{vT+4}, v{vT+6}, v{vT+7}", "s_nop 1",
          f"v_readfirstlane_b32 s{sT}, v{vT+4}", "s_nop 1", f"s_cmp_eq_u32 s{sT}, 0", "s_cbranch_scc1 Lend",
          f"s_mov_b32 s{sSafe}, 1", "s_waitcnt vmcnt(0)", "s_barrier", "s_branch Lcold", "Lend:", "s_endpgm"]
    return L

def entry():
    t = sT
    L = ["s_cmp_ge_u32 s2, 256", "s_cbranch_scc1 Lend",
         f"s_load_dwordx4 s[{t}:{t+3}], s[0:1], 0", f"s_load_dwordx2 s[{t+4}:{t+5}], s[0:1], 16", f"s_load_dwordx2 s[{t+6}:{t+7}], s[0:1], 32",
         f"s_getpc_b64 s[{t+8}:{t+9}]", "Lpc:", f"s_add_u32 s{t+8}, s{t+8}, Ltab-Lpc", f"s_addc_u32 s{t+9}, s{t+9}, 0",
         "v_mul_u32_u24 v20, 48, v0", "s_lshr_b32 s3, s2, 3", "v_and_b32 v21, 63, v0", "v_lshrrev_b32 v22, 6, v0",
         f"global_load_dwordx4 v[24:27], v20, s[{t+8}:{t+9}]", f"global_load_dwordx4 v[28:31], v20, s[{t+8}:{t+9}] offset:16",
         f"global_load_dwordx4 v[32:35], v20, s[{t+8}:{t+9}] offset:32",
         f"v_readfirstlane_b32 s{sWave}, v22",
         f"s_lshl_b32 s{t+10}, s3, 8", f"s_add_u32 s{t+10}, s{t+10}, {256*48}", f"v_lshl_add_u32 v23, v21, 2, s{t+10}",
         f"global_load_dword v{vStr}, v23, s[{t+8}:{t+9}]",
         f"s_lshl_b32 s{t+10}, s3, 10", f"s_add_u32 s{t+10}, s{t+10}, {256*48 + 32*256}", f"v_lshl_add_u32 v23, v0, 2, s{t+10}",
         f"global_load_dword v{vItem}, v23, s[{t+8}:{t+9}]"]
    c = struct.unpack("<I", struct.pack("<f", (128 ** -0.5) * math.log2(math.e)))[0]
    thr = struct.unpack("<I", struct.pack("<f", OPT["thr"]))[0]
    L += [f"s_mov_b32 s{sC}, {c:#x}", f"s_mov_b32 s{sC+1}, {c:#x}", f"s_mov_b32 s{sThr}, {thr:#x}"]
    for r in range(4):
        m = sum(1 << l for l in range(64) if 4 * (l >> 4) + r > (l & 15))
        L += [f"s_mov_b32 s{sM+2*r}, {m & 0xffffffff:#x}", f"s_mov_b32 s{sM+2*r+1}, {m >> 32:#x}"]
    L += [f"s_mov_b64 {s2(sBad)}, 0", f"s_mov_b32 s{sSafe}, 0", f"v_mov_b32 v{vNinf}, 0xff800000",
          f"s_mul_i32 s{sWK}, s{sWave}, 4160", f"s_add_u32 s{sWV}, s{sWK}, {VBASE}",
          f"s_and_b32 s{t+10}, s2, 7", f"s_lshl_b32 s{t+11}, s{t+10}, 8", f"s_lshl_b32 s{t+10}, s{t+10}, 9"]
    for i in range(4): L.append(f"v_accvgpr_write_b32 a{aZero+i}, 0")
    L += ["s_waitcnt lgkmcnt(0)"]
    for srd, p, ho in ((sK, t+2, t+11), (sV, t+4, t+11), (sQ, t, t+10), (sO, t+6, t+10), (sKS, t+2, t+11)):
        L += [f"s_add_u32 s{srd}, s{p}, s{ho}", f"s_addc_u32 s{srd+1}, s{p+1}, 0", f"s_mov_b32 s{srd+2}, 0", f"s_mov_b32 s{srd+3}, 0x20000"]
    L += ["s_waitcnt vmcnt(0)"]
    for i in range(12): L.append(f"v_mov_b32 v{3+i}, v{24+i}")
    for i in range(4): L.append(f"v_accvgpr_write_b32 a{aOnes+i}, v{vOnes}")
    L += ["Lcold:", f"s_mov_b32 s{sItem}, 0", f"s_mov_b32 s{sIdx}, 0", f"s_mov_b32 s{sCold}, 1", RDL, f"s_mov_b32 m0, s{sWK}"]
    L += DEC + dmas(0) + next_fields() + qloads()
    for i in range(2):
        L += [RDL, f"s_mov_b32 s{sVoff}, s{sKoff}", f"s_mov_b32 s{sV+2}, s{sK+2}", f"s_add_u32 m0, s{sWV}, {i*TILE}"] + DEC + dmas(1)
        L += [f"s_add_u32 m0, s{sWK}, {(i+1)*TILE}", "s_nop 0"] + dmas(0)
    L += [RDL, f"s_mov_b32 s{sVoff}, s{sKoff}", f"s_mov_b32 s{sV+2}, s{sK+2}"] + DEC
    L += [f"s_mov_b32 s{sRa}, 0", f"s_mov_b32 s{sRb}, {TILE}", f"s_mov_b32 s{sRc}, {2*TILE}", f"v_mov_b32 v{vK}, v{vKb}", f"v_mov_b32 v{vV}, v{vVb}"]
    return L

def tables(slots):
    T = []
    for w in range(4):
        for l in range(64):
            quad = l >> 4; m = l & 15
            kb = FMAP[m] * 1040 + 32 * (quad & 1) + 16 * (quad >> 1)
            c = l & 3
            vb = VBASE + FMAP[4 * quad + ((l >> 2) & 3)] * 1040 + 8 * (c & 1) + 128 * (c >> 1)
            d = [(16 * quad + FINV[4 * w + i]) * 2048 + m * 16 - 1040 * i for i in range(4)]
            assert min(d) >= 0
            qo = (l >> 5) * 4096 + (l & 31) * 16
            base = STG + w * STGW
            sl = base + ((l >> 4) & 1) * 4352 + (l >> 5) * 272 + 16 * m
            so = base + m * 272 + 8 * (quad & 1) + 128 * (quad >> 1)
            sq = base + m * 272 + 32 * (quad & 1) + 16 * (quad >> 1)
            ks = m * 2048 + 32 * (quad & 1) + 16 * (quad >> 1)
            ones = 0x3f803f80 if (m & 3) == 0 else 0
            T += [kb, vb] + d + [qo, sl, so, sq, ks, ones]
    for s in slots:
        st = []
        for it in s:
            for e in range(it['E']): st.append((CU[it['seq']] + 64 * e) | (CU[it['seq'] + 1] << 16))
        assert len(st) <= 60
        T += st + [0] * (64 - len(st))
    for s in slots:
        assert len(s) <= 8
        for w in range(4):
            row = []
            for i, it in enumerate(s):
                (kA, okA), (kB, okB) = it['waves'][w]
                s0, e0 = CU[it['seq']], CU[it['seq'] + 1]
                nS, nL = (kA >> 1) + 1, (kB >> 1) + 1
                assert nL > nS
                fl = (kA & 1) | ((kB & 1) << 1) | (okA << 2) | (okB << 3) | ((i == len(s) - 1) << 4)
                row += [(s0 + 16 * kA) * 4096, (s0 + 16 * kB) * 4096, e0 * 4096, nS - 1, nL - nS - 1,
                        it['E'] - 1 - ((nL - 1) >> 1), fl, s0 * 2048]
            T += row + [0] * (64 - len(row))
    return T

def build(slots):
    del outline[:]
    body = entry() + prologue()
    info = []
    for nm, fn in (("F", blockF), ("T", blockT), ("H", blockH)):
        for par in range(2):
            B = fn(par)
            info.append((nm, par, B.n, B.over()))
            if nm == "F" and par == 0: body.append(".p2align 6")if False else None
            body += [f"L{nm}{par}:"] + B.emit()
    body += ["LL0:"] + blockL(0) + ["s_branch Ltail", "LL1:"] + blockL(1)
    tl = tail()
    body += tl[:-2] + outline + tl[-2:]
    head = open(os.path.join(os.path.dirname(os.path.abspath(__file__)), "head.txt")).read().rstrip("\n").split("\n")
    L = head + [f"; @launch grid=(256,1,1) block=(256,1,1) lds={LDS_BYTES}",
         '.amdgcn_target "amdgcn-amd-amdhsa--gfx950"', ".text", f".globl {NAME}_kernel", ".p2align 8",
         f".type {NAME}_kernel,@function", f"{NAME}_kernel:"]
    L += [x if x.endswith(":") else "  " + x for x in body]
    L += [".p2align 8", ".type Ltab,@object", "Ltab:"]
    T = tables(slots)
    for i in range(0, len(T), 16): L.append(".long " + ",".join(str(x) for x in T[i:i+16]))
    L += [f".size Ltab, {4*len(T)}", '.section .rodata,"a"', ".p2align 6", f".amdhsa_kernel {NAME}_kernel",
          "  .amdhsa_next_free_vgpr 512", "  .amdhsa_next_free_sgpr 102", "  .amdhsa_accum_offset 256",
          "  .amdhsa_group_segment_fixed_size 0", "  .amdhsa_kernarg_size 56", "  .amdhsa_user_sgpr_count 2",
          "  .amdhsa_user_sgpr_kernarg_segment_ptr 1", "  .amdhsa_system_sgpr_workgroup_id_x 1", ".end_amdhsa_kernel"]
    return "\n".join(L) + "\n", info

if __name__ == "__main__":
    here = os.path.dirname(os.path.abspath(__file__))
    out = os.path.join(here, "..", "cdna_kernels", NAME + ".s")
    sched = os.path.join(here, "sched.json")
    for a in sys.argv[1:]:
        k, v = a.split("=")
        if k == "out": out = v
        elif k == "sched": sched = v
        else: OPT[k] = type(OPT[k])(v)
    txt, info = build(json.load(open(sched)))
    open(out, "w").write(txt)
    print(info, len(txt))
    hazcheck.check(txt)
    hazcheck.check_scc(txt)
```

```python
import sys
sys.path.insert(0, "work")
src = """; @launch grid=(256,1,1) block=(256,1,1) lds=0
.amdgcn_target "amdgcn-amd-amdhsa--gfx950"
.text
.globl mb_kernel
.p2align 8
.type mb_kernel,@function
mb_kernel:
  s_cmp_ge_u32 s2, 256
  s_cbranch_scc1 Lend
  s_load_dwordx4 s[4:7], s[0:1], 0
  s_load_dwordx2 s[12:13], s[0:1], 48
  s_waitcnt lgkmcnt(0)
  s_load_dwordx2 s[20:21], s[6:7], 0
  s_mov_b32 s8, s4
  s_mov_b32 s9, s5
  s_mov_b32 s10, 0x8000000
  s_mov_b32 s11, 0x20000
  s_mov_b32 s14, 65536
  s_mov_b32 s15, 0x20000
  v_and_b32 v1, 7, v0
  v_lshlrev_b32 v1, 4, v1
  s_waitcnt lgkmcnt(0)
  s_mov_b64 exec, 0xff
  buffer_load_dwordx4 v[4:7], v1, s[8:11], s20 offen sc1
  buffer_load_dwordx4 v[4:7], v1, s[8:11], s21 offen sc1
  s_waitcnt vmcnt(0)
  s_barrier
  s_memtime s[24:25]
  s_mov_b32 s22, 40
Lloop:
.rept 8
  buffer_load_dwordx4 v[4:7], v1, s[8:11], s20 offen sc1
  buffer_load_dwordx4 v[8:11], v1, s[8:11], s21 offen sc1
.endr
  s_waitcnt vmcnt(16)
  s_sub_u32 s22, s22, 1
  s_cmp_lg_u32 s22, 0
  s_cbranch_scc1 Lloop
  s_waitcnt vmcnt(0)
  s_memtime s[26:27]
  s_waitcnt lgkmcnt(0)
  s_sub_u32 s26, s26, s24
  v_mov_b32 v2, s26
  s_lshl_b32 s23, s2, 2
  v_mov_b32 v3, 0
  s_mov_b64 exec, 1
  buffer_store_dword v2, v3, s[12:15], s23 offen
  s_waitcnt vmcnt(0)
Lend:
  s_endpgm
.section .rodata,"a"
.p2align 6
.amdhsa_kernel mb_kernel
  .amdhsa_next_free_vgpr 16
  .amdhsa_next_free_sgpr 32
  .amdhsa_accum_offset 16
  .amdhsa_group_segment_fixed_size 0
  .amdhsa_kernarg_size 56
  .amdhsa_user_sgpr_count 2
  .amdhsa_user_sgpr_kernarg_segment_ptr 1
  .amdhsa_system_sgpr_workgroup_id_x 1
.end_amdhsa_kernel
"""
open("t_hash.s", "w").write(src)
if len(sys.argv) > 1:
    from runner import *
    big = DeviceBuffer(128<<20); par = DeviceBuffer(4096); bw = DeviceBuffer(1<<20)
    memset(big, 1)
    ka = pack_ptr_kernargs([big.ptr, par.ptr, bw.ptr, bw.ptr, bw.ptr, bw.ptr, bw.ptr])
    k,g,b,lds = build("work/t_hash.s", "mb_kernel")
    print("base", hex(big.ptr))
    def t(a, c):
        x = np.array([a, c], np.uint32)
        _check(_hip.hipMemcpy(ctypes.c_void_p(par.ptr), x.ctypes.data_as(ctypes.c_void_p), 8, 1))
        k.launch(g,b,ka,lds); sync()
        return int(np.median(bw.to_numpy(np.uint32, (256,))))
    print("same", t(0, 0), t(0, 0))
    single = {i: t(0, 1 << i) for i in range(7, 27)}
    print(single)
    thr = (max(single.values()) + min(single.values())) / 2
    thr = max(thr, min(single.values()) * 1.4)
    basis = []
    for i in range(7, 27):
        hit = None
        for c in range(1 << len(basis)):
            m = (1 << i);
            for j, bb in enumerate(basis):
                if c >> j & 1: m ^= 1 << bb
            if t(0, m) > thr: hit = c; break
        if hit is None:
            if len(basis) < 6: basis.append(i); print(i, "basis")
            else: print(i, "?")
        else: print(i, "=", [basis[j] for j in range(len(basis)) if hit >> j & 1])
```
